```python
import torch

def _softmax(x, axis=-1):
    return torch.softmax(x, dim=axis)

def _gelu(x):
    return torch.nn.functional.gelu(x, approximate='tanh')

def _silu(x):
    return torch.nn.functional.silu(x)

def _sigmoid(x):
    return torch.sigmoid(x)

def _layernorm(x, axis=-1, eps=1e-05):
    m = x.mean(dim=axis, keepdim=True)
    v = x.var(dim=axis, keepdim=True, unbiased=False)
    return (x - m) / torch.sqrt(v + eps)

def _scatter_add(tgt, idx, src, axis=0):
    return tgt.clone().index_add_(axis, idx, src)

def _segment_sum(src, seg, n):
    out = torch.zeros((n,) + src.shape[1:], dtype=src.dtype)
    return out.index_add_(0, seg, src)

def _pad(x, pw):
    flat = tuple((v for pair in reversed(pw) for v in pair))
    return torch.nn.functional.pad(x, flat)
kernel_name = 'adaLN_cond__ssm_conv_s4__dense_activation_silu__prompt'

def setup_inputs():

    _w = lambda a: (lambda t: t.to(torch.bfloat16) if t.is_floating_point() else t)(torch.as_tensor(a))

    def _A_setup():
        B, L, D, N = (1, 2048, 512, 128)
        A_re = -(lambda _x: torch.exp(torch.as_tensor(_x)))((lambda *s: torch.randn(*s, dtype=torch.bfloat16) * 3.2)(D, N))
        A_im = torch.pi * (lambda *s: torch.randn(*s, dtype=torch.bfloat16) * 0.05)(D, N)
        B_re = (lambda *s: torch.randn(*s, dtype=torch.bfloat16) * 0.1)(D, N)
        B_im = (lambda *s: torch.randn(*s, dtype=torch.bfloat16) * 0.1)(D, N)
        C_re = (lambda *s: torch.randn(*s, dtype=torch.bfloat16) * 0.1)(D, N)
        C_im = (lambda *s: torch.randn(*s, dtype=torch.bfloat16) * 0.1)(D, N)
        log_dt = (lambda *s: torch.randn(*s, dtype=torch.bfloat16) * 0.05)(D) * 0.5 - 4.0
        Dskip = (lambda *s: torch.randn(*s, dtype=torch.bfloat16) * 0.05)(D)
        return {'u': _w((lambda *s: torch.randn(*s, dtype=torch.bfloat16) * 0.05)(B, L, D)), 'A_re': _w(A_re), 'A_im': _w(A_im), 'B_re': _w(B_re), 'B_im': _w(B_im), 'C_re': _w(C_re), 'C_im': _w(C_im), 'log_dt': _w(log_dt), 'Dskip': _w(Dskip)}
    _A_in = _A_setup()

    def _B_setup():
        B, S, D, F = (1, 2048, 512, 1792)
        return {'x': _w((lambda *s: torch.randn(*s, dtype=torch.bfloat16) * 0.05)(B, S, D)), 'w1': _w((lambda *s: torch.randn(*s, dtype=torch.bfloat16) * 3.2)(D, F) * D ** (-0.5)), 'w2': _w((lambda *s: torch.randn(*s, dtype=torch.bfloat16) * 0.4)(F, D) * F ** (-0.5))}
    _B_in = _B_setup()
    return {'A_u': _A_in['u'], 'A_A_re': _A_in['A_re'], 'A_A_im': _A_in['A_im'], 'A_B_re': _A_in['B_re'], 'A_B_im': _A_in['B_im'], 'A_C_re': _A_in['C_re'], 'A_C_im': _A_in['C_im'], 'A_log_dt': _A_in['log_dt'], 'A_Dskip': _A_in['Dskip'], 'B_x': _B_in['x'], 'B_w1': _B_in['w1'], 'B_w2': _B_in['w2'], 'c': _w((lambda *s: torch.randn(*s, dtype=torch.bfloat16) * 0.2)(1, 512) * 8.0), 'w_mod': _w((lambda *s: torch.randn(*s, dtype=torch.bfloat16) * 0.2)(512, 6 * 512) * 512 ** (-0.5) * 8.0)}

def reference(A_u, A_A_re, A_A_im, A_B_re, A_B_im, A_C_re, A_C_im, A_log_dt, A_Dskip, B_x, B_w1, B_w2, c, w_mod):

    def _A_ref(u, A_re, A_im, B_re, B_im, C_re, C_im, log_dt, Dskip):
        Bsz, L, D = u.shape
        dt = torch.exp(log_dt)[:, None]
        A = A_re + 1j * A_im
        Bc = B_re + 1j * B_im
        Cc = C_re + 1j * C_im
        logdA = dt * A
        dB = dt * Bc
        l = (lambda x, dt: x.to(dt))(torch.arange(L), A_re.dtype)
        P = torch.exp(logdA[:, :, None] * l[None, None, :])
        K = torch.einsum('dn,dnl,dn->dl', Cc, P, dB).real
        L2 = 2 * L
        Kp = _pad(K, ((0, 0), (0, L)))
        up = (lambda x, *d: x.permute(*d))(u, 0, 2, 1)
        up = _pad(up, ((0, 0), (0, 0), (0, L)))
        Kf = (lambda x, axes=(-2, -1): torch.fft.rfft2(x.float(), dim=axes))(Kp[:, None, :], axes=(-2, -1))
        Uf = (lambda x, axes=(-2, -1): torch.fft.rfft2(x.float(), dim=axes))(up[:, :, None, :], axes=(-2, -1))
        Yf = Uf * Kf[None, :, :, :]
        y = (lambda x, s, axes=(-2, -1): torch.fft.irfft2(x, s=s, dim=axes).to(torch.bfloat16))(Yf, (1, L2), axes=(-2, -1))[:, :, 0, :L]
        y = (lambda x, *d: x.permute(*d))(y, 0, 2, 1) + u * Dskip[None, None, :]
        return y

    def _B_ref(x, w1, w2):
        h = torch.einsum('bsd,df->bsf', x, w1)
        h = _silu(h)
        out = torch.einsum('bsf,fd->bsd', h, w2)
        return out
    x = A_u
    mod = (_silu(c) @ w_mod).reshape(c.shape[0], 6, 1, -1)
    sa, ca, ga, sb, cb, gb = (mod[:, 0].clone(), mod[:, 1].clone(), mod[:, 2].clone(), mod[:, 3].clone(), mod[:, 4].clone(), mod[:, 5].clone())
    h = _layernorm(x, axis=-1) * (1 + ca) + sa
    x = x + ga * _A_ref(h, A_A_re, A_A_im, A_B_re, A_B_im, A_C_re, A_C_im, A_log_dt, A_Dskip)
    h = _layernorm(x, axis=-1) * (1 + cb) + sb
    x = x + gb * _B_ref(h, B_w1, B_w2)
    return x
```

```python
import re

TRANS = ('v_exp_f32', 'v_log_f32', 'v_rcp_f32', 'v_rsq_f32', 'v_sqrt_f32', 'v_sin_f32', 'v_cos_f32')
REG_RE = re.compile(r'^(-|\|)?(abs\()?([vsa])(?:(\d+)|\[(\d+):(\d+)\])\)?\|?$')


def parse_reg(tok):
    tok = tok.strip()
    if tok == 'vcc':
        return {('s', 'vcc_lo'), ('s', 'vcc_hi')}
    if tok in ('vcc_lo', 'vcc_hi'):
        return {('s', tok)}
    if tok == 'exec':
        return {('s', 'exec')}
    if tok == 'm0':
        return {('s', 'm0')}
    m = REG_RE.match(tok)
    if not m:
        return set()
    k = m.group(3)
    if m.group(4) is not None:
        return {(k, int(m.group(4)))}
    return {(k, i) for i in range(int(m.group(5)), int(m.group(6)) + 1)}


def split_ops(rest):
    ops, cur, depth = [], '', 0
    for ch in rest:
        if ch in '[(':
            depth += 1
        if ch in '])':
            depth -= 1
        if ch == ',' and depth == 0:
            ops.append(cur.strip())
            cur = ''
        else:
            cur += ch
    if cur.strip():
        ops.append(cur.strip())
    mods = ''
    if ops:
        parts = ops[-1].split(None, 1)
        ops[-1] = parts[0]
        if len(parts) > 1:
            mods = parts[1]
    return ops, mods


class Ins:
    __slots__ = ('text', 'op', 'kind', 'wr', 'rd', 'srcc', 'srcab', 'passes', 'dpp', 'states', 'storedata', 'lds_dma')

    def __init__(self, text):
        self.text = text
        t = text.split(';')[0].strip()
        sp = t.split(None, 1)
        op = sp[0]
        rest = sp[1] if len(sp) > 1 else ''
        for suf in ('_e32', '_e64'):
            if op.endswith(suf):
                op = op[:-4]
        self.op = op
        ops, mods = split_ops(rest)
        regs = [parse_reg(o) for o in ops]
        self.wr, self.rd = set(), set()
        self.srcc, self.srcab = set(), set()
        self.passes = 0
        self.dpp = op.endswith('_dpp') or 'quad_perm' in mods or 'row_' in mods
        self.states = 1
        self.storedata = set()
        self.lds_dma = False
        allr = set().union(*regs) if regs else set()
        if op == 's_nop':
            self.kind = 'nop'
            self.states = int(ops[0], 0) + 1
        elif op.startswith('v_mfma'):
            self.kind = 'mfma'
            self.wr = regs[0]
            self.srcab = regs[1] | regs[2]
            self.srcc = regs[3]
            self.rd = self.srcab | self.srcc
            if '16x16x32' in op:
                self.passes = 4
            elif '32x32x16' in op:
                self.passes = 8
            else:
                raise ValueError('unknown mfma ' + op)
        elif op.startswith('v_'):
            self.kind = 'trans' if op in TRANS else 'valu'
            if op.startswith('v_cmp'):
                self.wr = regs[0]
                self.rd = set().union(*regs[1:])
                if op.startswith('v_cmpx'):
                    self.wr = self.wr | {('s', 'exec')}
            elif op in ('v_permlane32_swap_b32', 'v_permlane16_swap_b32', 'v_swap_b32'):
                self.wr = allr
                self.rd = allr
            elif op.startswith(('v_add_co', 'v_sub_co', 'v_addc_co', 'v_subb_co', 'v_subrev_co')):
                self.wr = regs[0] | regs[1]
                self.rd = set().union(*regs[2:])
            else:
                self.wr = regs[0]
                self.rd = set().union(*regs[1:]) if len(regs) > 1 else set()
                if op.startswith(('v_fmac', 'v_dot2c', 'v_pk_fmac', 'v_writelane')) or self.dpp:
                    self.rd = self.rd | regs[0]
        elif op.startswith('ds_'):
            self.kind = 'ds'
            if op.startswith(('ds_read', 'ds_bpermute', 'ds_permute', 'ds_swizzle')) or '_rtn' in op:
                self.wr = regs[0]
                self.rd = set().union(*regs[1:])
                if 'd16' in op:
                    self.rd |= regs[0]
            else:
                self.rd = allr
        elif op.startswith(('global_', 'buffer_', 'flat_')):
            self.kind = 'vmem'
            islds = '_lds_' in op or re.search(r'\blds\b', mods) is not None
            if islds:
                self.rd = allr | {('s', 'm0')}
                self.lds_dma = True
            elif '_load' in op:
                self.wr = regs[0]
                self.rd = set().union(*regs[1:])
                if 'd16' in op:
                    self.rd |= regs[0]
            elif '_atomic' in op and 'sc0' in mods:
                self.wr = regs[0]
                self.rd = set().union(*regs[1:])
            else:
                self.rd = allr
                if 'dwordx4' in op or 'dwordx3' in op:
                    self.storedata = regs[1] if op.startswith('global') else regs[0]
        elif op.startswith('s_load') or op.startswith('s_buffer_load') or op in ('s_memtime', 's_memrealtime'):
            self.kind = 'smem'
            self.wr = regs[0]
            self.rd = set().union(*regs[1:]) if len(regs) > 1 else set()
        elif op.startswith('s_'):
            self.kind = 'salu'
            if op.startswith(('s_cmp', 's_cbranch', 's_branch', 's_waitcnt', 's_barrier', 's_endpgm', 's_sleep', 's_setprio', 's_bitcmp')):
                self.rd = allr
            else:
                self.wr = regs[0] if regs else set()
                self.rd = set().union(*regs[1:]) if len(regs) > 1 else set()
                if 'saveexec' in op:
                    self.wr = self.wr | {('s', 'exec')}
        else:
            raise ValueError('unknown instruction: ' + text)


def is_vec(r):
    return r[0] in ('v', 'a')


def need_states(p, c):
    n = 0
    pv = p.kind in ('valu', 'trans')
    cv = c.kind in ('valu', 'trans')
    pw_v = {r for r in p.wr if is_vec(r)}
    pw_s = {r for r in p.wr if not is_vec(r)}
    if pv:
        if c.kind == 'mfma' and pw_v & c.rd:
            n = max(n, 2)
        if c.kind == 'mfma' and ('s', 'exec') in pw_s:
            n = max(n, 4)
        if cv and c.dpp and pw_v & c.rd:
            n = max(n, 2)
        if cv and c.dpp and ('s', 'exec') in pw_s:
            n = max(n, 5)
        if cv and c.op.startswith('v_permlane') and pw_v & c.rd:
            n = max(n, 2)
        if cv and c.op in ('v_readlane_b32', 'v_readfirstlane_b32') and pw_v & c.rd:
            n = max(n, 1)
        if p.kind == 'trans' and (cv or c.kind == 'mfma') and pw_v & c.rd:
            n = max(n, 1)
        if pw_s:
            if cv and pw_s & c.rd:
                n = max(n, 4 if c.op in ('v_readlane_b32', 'v_writelane_b32') else 2)
            if c.kind == 'vmem' and pw_s & c.rd:
                n = max(n, 5)
            if ('s', 'exec') in pw_s and cv and c.op in ('v_readlane_b32', 'v_readfirstlane_b32', 'v_writelane_b32'):
                n = max(n, 4)
            if ('s', 'exec') in pw_s and cv and c.op.startswith('v_permlane'):
                n = max(n, 4)
            if c.kind in ('salu', 'smem') and pw_s & c.rd:
                n = max(n, 2)
        if p.op.startswith('v_dot') and (cv or c.kind in ('mfma', 'ds', 'vmem')) and (pw_v & (c.rd | c.wr)):
            same_acc = (c.op == p.op and pw_v & c.wr and not c.kind == 'mfma')
            if not same_acc:
                n = max(n, 3)
    if p.kind == 'salu' and ('s', 'm0') in p.wr and c.kind == 'vmem' and c.lds_dma:
        n = max(n, 1)
    if p.kind == 'vmem' and p.storedata and (p.storedata & c.wr):
        n = max(n, 2 if cv else 1)
    if p.kind == 'mfma':
        full = {4: 8, 8: 12}[p.passes]
        part = {4: 6, 8: 10}[p.passes]
        war = {4: 3, 8: 7}[p.passes]
        if c.kind == 'mfma':
            if p.wr & c.srcab:
                n = max(n, full)
            if p.wr & c.srcc and not (p.wr == c.srcc and p.passes == c.passes):
                n = max(n, part)
            if p.wr & c.wr and not (p.wr == c.srcc and p.passes == c.passes):
                n = max(n, part)
        elif c.kind in ('valu', 'trans', 'ds', 'vmem'):
            if p.wr & (c.rd | c.wr):
                n = max(n, full)
            if cv and p.srcc & c.wr:
                n = max(n, war)
    return n


class Asm:
    def __init__(self):
        self.lines = []
        self.uid = 0

    def __call__(self, text):
        for ln in text.strip().split('\n'):
            ln = ln.strip()
            if not ln or ln.startswith(';'):
                if ln:
                    self.lines.append(('l', '    ' + ln))
                continue
            if ln.endswith(':') or ln.startswith('.'):
                self.lines.append(('l', ln))
            else:
                self.lines.append(('i', Ins(ln)))

    def label(self, base='L'):
        self.uid += 1
        return '%s_%d' % (base, self.uid)

    def raw(self, text):
        self.lines.append(('l', text))

    def hazard_flush(self):
        self.lines.append(('f', None))

    def render(self):
        out = []
        hist = []
        nnop = 0
        for kind, x in self.lines:
            if kind == 'l':
                out.append(x)
                if x.endswith('_kernel:'):
                    hist = []
                continue
            if kind == 'f':
                worst = 0
                for p, dist in hist:
                    w = 0
                    if p.kind == 'mfma':
                        w = {4: 8, 8: 12}[p.passes]
                    elif p.kind in ('valu', 'trans'):
                        w = 5 if any(not is_vec(r) for r in p.wr) else (3 if p.op.startswith('v_dot') else 2)
                    elif p.kind == 'vmem' and p.storedata:
                        w = 2
                    elif p.kind == 'salu' and ('s', 'm0') in p.wr:
                        w = 1
                    worst = max(worst, w - dist)
                if worst > 0:
                    out.append('    s_nop %d' % (worst - 1))
                    nnop += 1
                hist = []
                continue
            need = 0
            for p, dist in hist:
                need = max(need, need_states(p, x) - dist)
            while need > 0:
                k = min(need, 16)
                out.append('    s_nop %d' % (k - 1))
                nnop += 1
                hist = [(p, d + k) for p, d in hist]
                need -= k
            out.append('    ' + x.text)
            hist = [(p, d + x.states) for p, d in hist if d + x.states < 24]
            hist.append((x, 0))
            if x.op in ('s_branch', 's_endpgm'):
                hist = []
        self.nnop = nnop
        return '\n'.join(out) + '\n'


def vr(base, n=1):
    return 'v%d' % base if n == 1 else 'v[%d:%d]' % (base, base + n - 1)


def sr(base, n=1):
    return 's%d' % base if n == 1 else 's[%d:%d]' % (base, base + n - 1)


def ar(base, n=1):
    return 'a%d' % base if n == 1 else 'a[%d:%d]' % (base, base + n - 1)


def f32bits(x):
    import struct
    return '0x%08x' % struct.unpack('<I', struct.pack('<f', x))[0]
```

```python
import sys, math
sys.path.insert(0, 'work')
from asmdsl import Asm, vr, sr, ar, f32bits
from gen import *

K2_CONV, K2_W1, K2_W2 = 256, 56, 56
K2_WGS = K2_CONV + K2_W1 + K2_W2
CV_KC = 0
CV_HB = 8 * KT_PITCH
CV_HP = 4608
CV_XB = CV_HB + 2 * CV_HP
CV_EX = CV_XB + 2 * 4096
K2_LDS = CV_EX + 16384


def modsum(a, d, p0, p1):
    a('v_add_f32 v%d, v%d, v%d' % (d, p0, p1))
    round_bf16(a, d, d)


def k2_conv(a):
    a('s_load_dwordx2 s[4:5], s[0:1], %d' % KA['ws'])
    a('s_load_dwordx2 s[6:7], s[0:1], %d' % KA['Dskip'])
    a('s_and_b32 s3, s2, 7')
    a('s_lshl_b32 s3, s3, 5')
    a('s_lshr_b32 s8, s2, 3')
    a('s_add_u32 s8, s8, s3')
    a('v_lshrrev_b32 v1, 6, v0')
    a('v_and_b32 v2, 63, v0')
    a('v_readfirstlane_b32 s9, v1')
    a('s_lshr_b32 s10, s9, 1')
    a('s_and_b32 s11, s9, 1')
    a('s_lshl_b32 s12, s8, 1')
    a('s_add_u32 s12, s12, s10')
    a('s_mul_i32 s13, s12, %d' % (2 * KT_PITCH))
    a('s_lshl_b32 s14, s11, 2')
    a('s_add_u32 s13, s13, s14')
    a('s_add_u32 s13, s13, 0x%x' % WS_KT)
    a('v_lshl_add_u32 v3, v2, 4, s13')
    a('v_add_u32 v4, %d, v3' % KT_PITCH)
    a('s_mul_i32 s14, s9, %d' % (2 * KT_PITCH))
    a('s_lshl_b32 s15, s8, 5')
    a('s_add_u32 s15, s15, 0x%x' % WS_XT)
    a('v_lshl_add_u32 v5, v0, 13, s15')
    a('v_lshlrev_b32 v6, 5, v0')
    a('v_add_u32 v6, 0x%x, v6' % WS_STATS)
    a('v_add_u32 v7, 8192, v6')
    a('s_lshl_b32 s15, s8, 4')
    a('v_mov_b32 v8, s15')
    a('v_add_u32 v9, 4096, v8')
    a('v_add_u32 v10, 8192, v8')
    a('s_lshl_b32 s15, s8, 2')
    a('v_mov_b32 v11, s15')
    a('s_waitcnt lgkmcnt(0)')
    a('global_load_dwordx4 v[16:19], v5, s[4:5]')
    a('global_load_dwordx4 v[20:23], v5, s[4:5] offset:16')
    a('global_load_dwordx4 v[24:27], v6, s[4:5]')
    a('global_load_dwordx4 v[28:31], v6, s[4:5] offset:16')
    a('global_load_dwordx4 v[32:35], v7, s[4:5]')
    a('global_load_dwordx4 v[36:39], v7, s[4:5] offset:16')
    a('global_load_dwordx4 v[40:43], v8, s[4:5]')
    a('global_load_dwordx4 v[44:47], v9, s[4:5]')
    a('global_load_dwordx4 v[48:51], v10, s[4:5]')
    a('global_load_dword v52, v11, s[6:7]')
    a('s_mov_b32 m0, s14')
    for k in range(4):
        a('global_load_lds_dwordx4 v3, s[4:5] offset:%d' % (1024 * k))
    a('s_add_u32 s14, s14, %d' % KT_PITCH)
    a('s_mov_b32 m0, s14')
    for k in range(4):
        a('global_load_lds_dwordx4 v4, s[4:5] offset:%d' % (1024 * k))
    for r in range(56, 60):
        a('v_mov_b32 v%d, 0' % r)
    a('v_lshrrev_b32 v12, 5, v0')
    a('v_mul_u32_u24 v12, %d, v12' % CV_HP)
    a('v_and_b32 v13, 31, v0')
    a('v_lshl_add_u32 v12, v13, 4, v12')
    a('v_add_u32 v12, %d, v12' % CV_HB)
    a('v_bfe_u32 v13, v0, 1, 3')
    a('v_mul_u32_u24 v13, %d, v13' % KT_PITCH)
    a('v_and_b32 v14, 1, v0')
    a('v_lshl_add_u32 v13, v14, 4, v13')
    a('v_add_u32 v13, 4096, v13')
    a('v_cmp_gt_u32 vcc, 64, v0')
    a('v_cndmask_b32 v12, v13, v12, vcc')
    a('v_cmp_gt_u32 vcc, 80, v0')
    a('s_and_saveexec_b64 s[16:17], vcc')
    a('ds_write_b128 v12, v[56:59]')
    a('s_mov_b64 exec, s[16:17]')
    a('v_and_b32 v12, 15, v0')
    a('v_bfe_u32 v13, v0, 4, 2')
    a('v_sub_u32 v14, 15, v12')
    a('v_and_b32 v15, 3, v14')
    a('v_sub_u32 v14, v14, v15')
    a('v_lshl_add_u32 v14, v13, 3, v14')
    a('v_lshlrev_b32 v14, 1, v14')
    a('v_mul_u32_u24 v15, %d, v15' % KT_PITCH)
    a('v_add_u32 v14, v14, v15')
    a('s_mul_i32 s15, s10, %d' % (4 * KT_PITCH))
    a('s_lshl_b32 s18, s11, 8')
    a('s_sub_u32 s15, s15, s18')
    a('s_add_u32 s15, s15, 256')
    a('v_add_u32 v14, s15, v14')
    a('v_lshlrev_b32 v15, 5, v12')
    a('v_lshl_add_u32 v15, v13, 4, v15')
    a('s_mul_i32 s15, s10, %d' % CV_HP)
    a('s_add_u32 s15, s15, %d' % (CV_HB + 288))
    a('s_sub_u32 s15, s15, s18')
    a('v_add_u32 v15, s15, v15')
    a('v_lshlrev_b32 v53, 4, v0')
    a('s_waitcnt vmcnt(8)')
    for ch in range(2):
        modsum(a, 60 + 2 * ch + 1, 40 + 2 * ch, 41 + 2 * ch)
        modsum(a, 60 + 2 * ch, 44 + 2 * ch, 45 + 2 * ch)
        a('v_add_f32 v%d, 1.0, v%d' % (60 + 2 * ch, 60 + 2 * ch))
        round_bf16(a, 60 + 2 * ch, 60 + 2 * ch)
        modsum(a, 64 + ch, 48 + 2 * ch, 49 + 2 * ch)
    a('v_lshlrev_b32 v66, 16, v52')
    a('v_and_b32 v67, 0xffff0000, v52')
    a('s_cmp_eq_u32 s10, 0')
    a('s_cselect_b64 vcc, -1, 0')
    a('v_cndmask_b32 v8, v65, v64, vcc')
    a('v_cndmask_b32 v9, v67, v66, vcc')
    for ch in range(2):
        a('ds_write_b128 v53, %s offset:%d' % (vr(16 + 4 * ch, 4), CV_XB + 4096 * ch))
        for k in range(4):
            a('v_lshlrev_b32 v%d, 16, v%d' % (70 + 2 * k, 16 + 4 * ch + k))
            a('v_and_b32 v%d, 0xffff0000, v%d' % (71 + 2 * k, 16 + 4 * ch + k))
        for k in range(4):
            a('v_pk_fma_f32 %s, %s, %s, %s' % (vr(70 + 2 * k, 2), vr(70 + 2 * k, 2), vr(24 + 2 * k, 2), vr(32 + 2 * k, 2)))
        for k in range(4):
            a('v_pk_fma_f32 %s, %s, %s, %s op_sel:[0,0,1] op_sel_hi:[1,0,1]' % (vr(70 + 2 * k, 2), vr(70 + 2 * k, 2), vr(60 + 2 * ch, 2), vr(60 + 2 * ch, 2)))
        for k in range(4):
            a('v_cvt_pk_bf16_f32 v%d, v%d, v%d' % (80 + 4 * ch + k, 70 + 2 * k, 71 + 2 * k))
        a('ds_write_b128 v53, %s offset:%d' % (vr(80 + 4 * ch, 4), CV_HB + CV_HP * ch + 512))
    a('v_lshlrev_b32 v10, 5, v12')
    a('v_lshl_add_u32 v10, v13, 3, v10')
    a('s_mul_i32 s15, s10, %d' % CV_HP)
    a('v_add_u32 v11, s15, v10')
    a('s_lshl_b32 s15, s10, 12')
    a('v_add_u32 v10, s15, v10')
    a('s_and_b32 s15, s12, 3')
    a('s_lshr_b32 s18, s12, 1')
    a('s_and_b32 s18, s18, 4')
    a('s_or_b32 s15, s15, s18')
    a('v_and_b32 v3, 7, v12')
    a('v_xor_b32 v3, s15, v3')
    a('v_lshlrev_b32 v3, 5, v3')
    a('v_lshl_add_u32 v3, v13, 3, v3')
    a('v_lshrrev_b32 v4, 3, v12')
    a('v_lshl_add_u32 v3, v4, 17, v3')
    a('s_lshl_b32 s15, s12, 8')
    a('s_add_u32 s15, s15, 0x%x' % WS_X1T)
    a('s_lshl_b32 s18, s11, 20')
    a('s_add_u32 s15, s15, s18')
    a('v_add_u32 v3, s15, v3')
    a('s_lshl_b32 s15, s9, 12')
    a('v_lshl_add_u32 v4, v2, 4, s15')
    a('v_xor_b32 v5, 4096, v4')
    a('s_waitcnt vmcnt(0) lgkmcnt(0)')
    a('s_barrier')
    ACC, AB, BB = 16, 48, 112
    AH = 4

    def reads(n):
        cc, k = divmod(n, 8)
        st = (cc & 1) * 32
        o = 2 * (1888 - 256 * k - 32 * cc)
        return ['ds_read_b64 %s, v14 offset:%d' % (vr(AB + st + 4 * k, 2), o),
                'ds_read_b64 %s, v14 offset:%d' % (vr(AB + st + 4 * k + 2, 2), o + 8),
                'ds_read_b128 %s, v15 offset:%d' % (vr(BB + st + 4 * k, 4), 2 * (256 * k + 96 - 32 * cc))]
    for n in range(AH):
        for r in reads(n):
            a(r)
    started = set()
    for n in range(32):
        cc, k = divmod(n, 8)
        st = (cc & 1) * 32
        a('s_waitcnt lgkmcnt(%d)' % (3 * (min(n + AH - 1, 31) - n)))
        pend = reads(n + AH) if n + AH < 32 else []
        pairs = [(k, j) for j in range(k + 1) if k + j <= 7] + [(i, k) for i in range(k) if i + k <= 7]
        for (i, j) in pairs:
            t = i + j
            a('v_mfma_f32_16x16x32_bf16 %s, %s, %s, %s' % (vr(ACC + 4 * t, 4), vr(AB + st + 4 * i, 4), vr(BB + st + 4 * j, 4),
                                                          vr(ACC + 4 * t, 4) if t in started else '0'))
            started.add(t)
            if pend:
                a(pend.pop(0))
        for r in pend:
            a(r)
    l1 = a.label('cv_hf1')
    a.hazard_flush()
    a('s_cmp_eq_u32 s11, 1')
    a('s_cbranch_scc1 %s' % l1)
    for hf in range(2):
        if hf:
            a(l1 + ':')
        own = [4 * hf + i for i in range(4)]
        oth = [4 * (1 - hf) + i for i in range(4)]
        for i, t in enumerate(oth):
            a('ds_write_b128 v4, %s offset:%d' % (vr(ACC + 4 * t, 4), CV_EX + 1024 * i))
        for i, t in enumerate(own):
            a('ds_read_b64 %s, v11 offset:%d' % (vr(64 + 2 * i, 2), CV_HB + 512 + 512 * t))
            a('ds_read_b64 %s, v10 offset:%d' % (vr(72 + 2 * i, 2), CV_XB + 512 * t))
        a('s_waitcnt lgkmcnt(0)')
        a('s_barrier')
        for i in range(4):
            a('ds_read_b128 %s, v5 offset:%d' % (vr(48 + 4 * i, 4), CV_EX + 1024 * i))
        for i, t in enumerate(own):
            for k in range(2):
                a('v_lshlrev_b32 v%d, 16, v%d' % (80 + 2 * k, 64 + 2 * i + k))
                a('v_and_b32 v%d, 0xffff0000, v%d' % (81 + 2 * k, 64 + 2 * i + k))
            for k in range(2):
                a('v_pk_fma_f32 %s, %s, v[8:9], %s op_sel:[0,1,0] op_sel_hi:[1,1,1]' % (vr(ACC + 4 * t + 2 * k, 2), vr(80 + 2 * k, 2), vr(ACC + 4 * t + 2 * k, 2)))
            for k in range(2):
                a('v_lshlrev_b32 v%d, 16, v%d' % (84 + 4 * i + 2 * k, 72 + 2 * i + k))
                a('v_and_b32 v%d, 0xffff0000, v%d' % (85 + 4 * i + 2 * k, 72 + 2 * i + k))
        for i, t in enumerate(own):
            a('s_waitcnt lgkmcnt(%d)' % (3 - i))
            for k in range(2):
                a('v_pk_add_f32 %s, %s, %s' % (vr(ACC + 4 * t + 2 * k, 2), vr(ACC + 4 * t + 2 * k, 2), vr(48 + 4 * i + 2 * k, 2)))
            for k in range(2):
                a('v_pk_fma_f32 %s, %s, v[8:9], %s op_sel:[0,0,0] op_sel_hi:[1,0,1]' % (vr(ACC + 4 * t + 2 * k, 2), vr(ACC + 4 * t + 2 * k, 2), vr(84 + 4 * i + 2 * k, 2)))
            for k in range(2):
                a('v_cvt_pk_bf16_f32 v%d, v%d, v%d' % (100 + 2 * i + k, ACC + 4 * t + 2 * k, ACC + 4 * t + 2 * k + 1))
            if i:
                a('v_add_u32 v3, 0x40000, v3')
            a('global_store_dwordx2 v3, %s, s[4:5]' % vr(100 + 2 * i, 2))
        a('s_endpgm')


def k2_w1(a):
    a('s_load_dwordx2 s[4:5], s[0:1], %d' % KA['ws'])
    a('s_load_dwordx2 s[6:7], s[0:1], %d' % KA['w1'])
    a('v_and_b32 v1, 3, v0')
    a('v_lshrrev_b32 v2, 2, v0')
    a('v_mul_u32_u24 v3, %d, v2' % (8 * 3584))
    a('s_lshl_b32 s3, s2, 6')
    a('v_lshl_add_u32 v4, v1, 4, s3')
    a('v_add_u32 v3, v3, v4')
    a('v_lshlrev_b32 v4, 6, v2')
    a('v_add_u32 v5, %d, v4' % (WS_MODP + 2048 * 8))
    a('v_add_u32 v4, %d, v4' % (WS_MODP + 1536 * 8))
    a('s_waitcnt lgkmcnt(0)')
    for k in range(4):
        a('global_load_dwordx4 %s, v5, s[4:5] offset:%d' % (vr(64 + 4 * k, 4), 16 * k))
    for k in range(4):
        a('global_load_dwordx4 %s, v4, s[4:5] offset:%d' % (vr(80 + 4 * k, 4), 16 * k))
    for e in range(8):
        if e and (e & 1) == 0:
            a('v_add_u32 v3, %d, v3' % (2 * 3584))
        a('global_load_dwordx4 %s, v3, s[6:7] offset:%d' % (vr(32 + 4 * e, 4), 3584 * (e & 1)))
    a('v_lshrrev_b32 v6, 1, v1')
    a('s_lshl_b32 s3, s2, 1')
    a('v_add_u32 v6, s3, v6')
    a('v_mul_u32_u24 v7, 9363, v6')
    a('v_lshrrev_b32 v7, 16, v7')
    a('v_mul_u32_u24 v8, 7, v7')
    a('v_sub_u32 v6, v6, v8')
    a('v_lshrrev_b32 v8, 2, v2')
    a('v_lshl_add_u32 v7, v7, 4, v8')
    a('v_mul_u32_u24 v7, 7, v7')
    a('v_add_u32 v7, v7, v6')
    a('v_lshlrev_b32 v7, 10, v7')
    a('v_and_b32 v8, 3, v2')
    a('v_lshl_add_u32 v7, v8, 8, v7')
    a('v_and_b32 v8, 1, v1')
    a('v_lshl_add_u32 v7, v8, 7, v7')
    a('v_add_u32 v7, 0x%x, v7' % WS_W1F)
    a('v_mov_b32 v9, 0x3f803f80')
    a('s_waitcnt vmcnt(8)')
    for e in range(8):
        modsum(a, 96 + e, 64 + 2 * e, 65 + 2 * e)
        a('v_add_f32 v%d, 1.0, v%d' % (96 + e, 96 + e))
        round_bf16(a, 96 + e, 96 + e)
        modsum(a, 104 + e, 80 + 2 * e, 81 + 2 * e)
    for m in range(4):
        a('s_waitcnt vmcnt(%d)' % (6 - 2 * m))
        for h in range(2):
            e = 2 * m + h
            for k in range(4):
                a('v_lshlrev_b32 v%d, 16, v%d' % (10 + 8 * h + 2 * k, 32 + 4 * e + k))
                a('v_and_b32 v%d, 0xffff0000, v%d' % (11 + 8 * h + 2 * k, 32 + 4 * e + k))
            sel = 'op_sel:[0,%d,0] op_sel_hi:[1,%d,1]' % (h, h)
            sel2 = 'op_sel:[0,%d] op_sel_hi:[1,%d]' % (h, h)
            for k in range(4):
                if e == 0:
                    a('v_pk_mul_f32 %s, %s, %s %s' % (vr(112 + 2 * k, 2), vr(10 + 8 * h + 2 * k, 2), vr(104 + 2 * m, 2), sel2))
                else:
                    a('v_pk_fma_f32 %s, %s, %s, %s %s' % (vr(112 + 2 * k, 2), vr(10 + 8 * h + 2 * k, 2), vr(104 + 2 * m, 2), vr(112 + 2 * k, 2), sel))
            for k in range(4):
                a('v_pk_mul_f32 %s, %s, %s %s' % (vr(10 + 8 * h + 2 * k, 2), vr(10 + 8 * h + 2 * k, 2), vr(96 + 2 * m, 2), sel2))
        for f in range(8):
            a('v_cvt_pk_bf16_f32 v%d, v%d, v%d' % (64 + 4 * f + m, 10 + f, 18 + f))
        for f in range(8):
            a('v_dot2_f32_bf16 v%d, v%d, v9, %s' % (120 + f, 64 + 4 * f + m, '0' if m == 0 else 'v%d' % (120 + f)))
    for f in range(8):
        a('global_store_dwordx4 v7, %s, s[4:5] offset:%d' % (vr(64 + 4 * f, 4), 16 * f))
    a('v_mul_u32_u24 v3, 160, v2')
    a('v_lshl_add_u32 v3, v1, 5, v3')
    a('ds_write_b128 v3, v[120:123]')
    a('ds_write_b128 v3, v[124:127] offset:16')
    a('ds_write_b128 v3, v[112:115] offset:10240')
    a('ds_write_b128 v3, v[116:119] offset:10256')
    a('v_lshrrev_b32 v4, 7, v0')
    a('v_bfe_u32 v5, v0, 2, 5')
    a('v_mul_u32_u24 v3, 10240, v4')
    a('v_mul_u32_u24 v6, 160, v1')
    a('v_add_u32 v3, v3, v6')
    a('v_lshl_add_u32 v3, v5, 2, v3')
    a('s_waitcnt lgkmcnt(0)')
    a('s_barrier')
    for i in range(16):
        a('ds_read_b32 v%d, v3 offset:%d' % (10 + i, 640 * i))
    a('v_lshlrev_b32 v4, 13, v4')
    a('v_lshl_add_u32 v4, v5, 2, v4')
    a('s_lshl_b32 s3, s2, 7')
    a('s_add_u32 s3, s3, 0x%x' % WS_U)
    a('v_add_u32 v4, s3, v4')
    a('s_waitcnt lgkmcnt(0)')
    for i in range(8):
        a('v_add_f32 v%d, v%d, v%d' % (10 + i, 10 + i, 18 + i))
    for i in range(4):
        a('v_add_f32 v%d, v%d, v%d' % (10 + i, 10 + i, 14 + i))
    a('v_add_f32 v10, v10, v12')
    a('v_add_f32 v11, v11, v13')
    a('v_add_f32 v10, v10, v11')
    a('v_add_f32_dpp v10, v10, v10 quad_perm:[1,0,3,2] row_mask:0xf bank_mask:0xf')
    a('v_add_f32_dpp v10, v10, v10 quad_perm:[2,3,0,1] row_mask:0xf bank_mask:0xf')
    a('v_cmp_eq_u32 vcc, 0, v1')
    a('s_and_saveexec_b64 s[8:9], vcc')
    a('global_store_dword v4, v10, s[4:5]')
    a('s_endpgm')
assert WS_V - WS_U == 0x2000


def k2_w2(a):
    a('s_load_dwordx2 s[4:5], s[0:1], %d' % KA['ws'])
    a('s_load_dwordx2 s[6:7], s[0:1], %d' % KA['w2'])
    a('s_mul_i32 s8, s2, 9363')
    a('s_lshr_b32 s8, s8, 16')
    a('s_mul_i32 s9, s8, 7')
    a('s_sub_u32 s9, s2, s9')
    a('s_lshl_b32 s10, s9, 5')
    a('s_cmp_ge_u32 s9, 3')
    a('s_cselect_b32 s11, 16, 0')
    a('s_add_u32 s10, s10, s11')
    a('s_cmp_eq_u32 s9, 6')
    a('s_cselect_b32 s10, 96, s10')
    a('s_cselect_b32 s11, 112, 16')
    a('s_mul_i32 s8, s8, 224')
    a('s_add_u32 s10, s10, s8')
    a('s_lshl_b32 s10, s10, 10')
    a('s_lshl_b32 s11, s11, 10')
    a('v_lshrrev_b32 v1, 6, v0')
    a('v_and_b32 v2, 63, v0')
    a('v_lshl_add_u32 v3, v1, 12, s10')
    a('v_lshl_add_u32 v3, v2, 4, v3')
    a('v_add_u32 v4, s11, v3')
    a('v_lshrrev_b32 v5, 3, v2')
    a('v_mul_u32_u24 v5, %d, v5' % (56 * 4096))
    a('v_bfe_u32 v6, v2, 1, 2')
    a('v_lshl_add_u32 v5, v6, 10, v5')
    a('v_lshl_add_u32 v5, v1, 8, v5')
    a('v_and_b32 v6, 1, v2')
    a('v_lshl_add_u32 v5, v6, 7, v5')
    a('s_lshl_b32 s3, s2, 12')
    a('s_add_u32 s3, s3, 0x%x' % WS_W2F)
    a('v_add_u32 v5, s3, v5')
    a('s_mov_b32 s8, 0x05040100')
    a('s_mov_b32 s9, 0x07060302')
    a('s_waitcnt lgkmcnt(0)')
    for r in range(8):
        a('global_load_dwordx4 %s, v%d, s[6:7] offset:%d' % (vr(8 + 4 * r, 4), 3 if r < 4 else 4, (r & 3) * 1024))
    a('s_waitcnt vmcnt(0)')
    for c in range(8):
        k, e = c >> 1, c & 1
        for m in range(4):
            a('v_perm_b32 v%d, v%d, v%d, s%d' % (40 + 4 * c + m, 8 + 4 * (2 * m + 1) + k, 8 + 4 * (2 * m) + k, 8 + e))
        a('global_store_dwordx4 v5, %s, s[4:5] offset:%d' % (vr(40 + 4 * c, 4), 16 * c))
    a('s_endpgm')


def kernel_k2(a):
    a('.p2align 8')
    a('k2_conv_kernel:')
    a('s_cmp_lt_u32 s2, %d' % K2_CONV)
    a('s_cbranch_scc1 k2_conv')
    a('s_sub_u32 s2, s2, %d' % K2_CONV)
    a('s_cmp_lt_u32 s2, %d' % K2_W1)
    a('s_cbranch_scc1 k2_w1')
    a('s_sub_u32 s2, s2, %d' % K2_W1)
    a('s_cmp_lt_u32 s2, %d' % K2_W2)
    a('s_cbranch_scc1 k2_w2')
    a('s_endpgm')
    a('k2_w1:')
    k2_w1(a)
    a('k2_w2:')
    k2_w2(a)
    a('k2_conv:')
    k2_conv(a)


G1_SLOT = 30720
G1_NSLOT = 5
K3_LDS = G1_SLOT * G1_NSLOT


def kernel_k3(a):
    a('.p2align 8')
    a('k3_gemm1_kernel:')
    a('s_cmp_ge_u32 s2, 256')
    a('s_cbranch_scc1 k3_end')
    a('s_load_dwordx2 s[4:5], s[0:1], %d' % KA['ws'])
    a('s_and_b32 s3, s2, 7')
    a('s_lshr_b32 s8, s2, 3')
    a('s_lshr_b32 s9, s8, 4')
    a('s_lshl_b32 s3, s3, 1')
    a('s_add_u32 s9, s9, s3')
    a('s_and_b32 s8, s8, 15')
    a('v_lshrrev_b32 v1, 6, v0')
    a('v_and_b32 v2, 63, v0')
    a('v_readfirstlane_b32 s10, v1')
    a('v_and_b32 v3, 15, v0')
    a('v_bfe_u32 v4, v0, 4, 2')
    a('s_lshl_b32 s11, s9, 17')
    a('s_lshl_b32 s12, s10, 13')
    a('s_add_u32 s11, s11, s12')
    a('s_add_u32 s11, s11, 0x%x' % WS_X1T)
    a('s_mul_i32 s13, s8, 114688')
    a('s_sub_u32 s14, s10, 2')
    a('s_mul_i32 s14, s14, 7168')
    a('s_add_u32 s13, s13, s14')
    a('s_add_u32 s13, s13, 0x%x' % WS_W1F)
    a('s_add_u32 s14, s14, 16384')
    a('s_cmp_lt_u32 s10, 2')
    a('s_cselect_b32 s11, s11, s13')
    a('s_cselect_b32 s12, s12, s14')
    a('s_mov_b32 s14, 14336')
    a('s_cselect_b32 s13, 16384, s14')
    a('v_lshl_add_u32 v5, v2, 4, s11')
    a('v_add_u32 v6, 4096, v5')
    a('s_mul_i32 s14, s8, 448')
    a('s_add_u32 s14, s14, 0x%x' % WS_U)
    a('v_lshl_add_u32 v7, v4, 4, s14')
    a('v_add_u32 v8, 0x2000, v7')
    UV = 192
    a('s_waitcnt lgkmcnt(0)')

    def dma(stage):
        slot = stage % G1_NSLOT
        a('s_add_u32 m0, s12, %d' % (slot * G1_SLOT))
        for k in range(4):
            a('global_load_lds_dwordx4 v5, s[4:5] offset:%d' % (1024 * k))
        a('s_add_u32 m0, s12, %d' % (slot * G1_SLOT + 4096))
        for k in range(3):
            a('global_load_lds_dwordx4 v6, s[4:5] offset:%d' % (1024 * k))
        lab = a.label('g1_skip')
        a('s_cmp_lt_u32 s10, 2')
        a('s_cbranch_scc0 %s' % lab)
        a('global_load_lds_dwordx4 v6, s[4:5] offset:3072')
        a(lab + ':')
        a('v_add_u32 v5, s13, v5')
        a('v_add_u32 v6, s13, v6')
    dma(0)
    for ft in range(7):
        a('global_load_dwordx4 %s, v7, s[4:5] offset:%d' % (vr(UV + 4 * ft, 4), 64 * ft))
    for ft in range(7):
        a('global_load_dwordx4 %s, v8, s[4:5] offset:%d' % (vr(UV + 28 + 4 * ft, 4), 64 * ft))
    for st in range(1, G1_NSLOT):
        dma(st)
    a('v_bfe_u32 v9, v0, 2, 2')
    a('v_and_b32 v10, 3, v0')
    a('v_and_b32 v11, 1, v4')
    a('v_lshl_or_b32 v11, v11, 2, v9')
    a('v_lshl_add_u32 v9, v4, 3, v9')
    a('v_lshlrev_b32 v9, 8, v9')
    a('v_lshl_add_u32 v9, v10, 3, v9')
    a('s_lshl_b32 s14, s10, 1')
    a('v_xor_b32 v11, s14, v11')
    a('v_lshl_add_u32 v12, v11, 5, v9')
    a('v_xor_b32 v13, 32, v12')
    a('v_lshlrev_b32 v14, 4, v2')
    a('v_add_u32 v14, 16384, v14')
    for r in range(16, 20):
        a('v_mov_b32 v%d, 0x3f803f80' % r)
    a('s_lshl_b32 s14, s9, 7')
    a('s_lshl_b32 s15, s10, 5')
    a('s_add_u32 s14, s14, s15')
    a('v_add_u32 v15, s14, v3')
    a('v_lshlrev_b32 v15, 10, v15')
    a('v_lshl_add_u32 v15, v4, 4, v15')
    a('s_lshl_b32 s14, s8, 6')
    a('s_add_u32 s14, s14, 0x%x' % WS_X1N)
    a('v_add_u32 v15, s14, v15')
    a('v_add_u32 v9, 16384, v15')
    ACC = 20
    SS = 76
    FR = 92
    cur = [0]

    def set_slot(slot):
        d = slot * G1_SLOT - cur[0]
        if d:
            for r in (12, 13, 14):
                if d > 0:
                    a('v_add_u32 v%d, %d, v%d' % (r, d, r))
                else:
                    a('v_subrev_u32 v%d, %d, v%d' % (r, -d, r))
            cur[0] = slot * G1_SLOT

    def reads(kap):
        kk = kap & 1
        f = FR + 36 * (kap & 1)
        out = []
        for n in range(2):
            for hs in range(2):
                out.append('ds_read_b64_tr_b16 %s, v%d offset:%d' % (vr(f + 4 * n + 2 * hs, 2), 12 + n, kk * 8192 + hs * 1024))
        for ft in range(7):
            out.append('ds_read_b128 %s, v14 offset:%d' % (vr(f + 8 + 4 * ft, 4), (kk * 7 + ft) * 1024))
        return out

    issued = [G1_NSLOT]

    def stage_sync(st):
        a('s_waitcnt vmcnt(%d) lgkmcnt(0)' % (7 * (issued[0] - 1 - st) + (14 if st == 0 else 0)))
        a('s_barrier')
        if st >= 1 and issued[0] < 8:
            dma(issued[0])
            issued[0] += 1
        set_slot(st % G1_NSLOT)

    stage_sync(0)
    for r in reads(0):
        a(r)
    for kap in range(16):
        f = FR + 36 * (kap & 1)
        if kap + 1 < 16 and (kap + 1) % 2 == 0:
            stage_sync((kap + 1) // 2)
        else:
            a('s_waitcnt lgkmcnt(0)')
        pend = reads(kap + 1) if kap + 1 < 16 else []
        lab = a.label('g1_nst')
        a('s_cmp_eq_u32 s8, %d' % kap)
        a('s_cbranch_scc0 %s' % lab)
        a('global_store_dwordx4 v15, %s, s[4:5]' % vr(f, 4))
        a('global_store_dwordx4 v9, %s, s[4:5]' % vr(f + 4, 4))
        a(lab + ':')
        ms = []
        for ft in range(7):
            for n in range(2):
                d = vr(ACC + 4 * (n * 7 + ft), 4)
                ms.append('v_mfma_f32_16x16x32_bf16 %s, %s, %s, %s' % (d, vr(f + 8 + 4 * ft, 4), vr(f + 4 * n, 4), d if kap else '0'))
        for n in range(2):
            d = vr(SS + 4 * n, 4)
            ms.append('v_mfma_f32_16x16x32_bf16 %s, v[16:19], %s, %s' % (d, vr(f + 4 * n, 4), d if kap else '0'))
            d = vr(SS + 8 + 4 * n, 4)
            ms.append('v_mfma_f32_16x16x32_bf16 %s, %s, %s, %s' % (d, vr(f + 4 * n, 4), vr(f + 4 * n, 4), d if kap else '0'))
        if kap == 15:
            ms = ms[14:] + ms[:14]
        for m in ms:
            a(m)
            if pend:
                a(pend.pop(0))
    a('v_and_b32 v5, 3, v0')
    a('v_lshrrev_b32 v6, 2, v3')
    a('v_lshl_add_u32 v6, v6, 4, v3')
    a('v_lshlrev_b32 v6, 2, v6')
    for n in range(2):
        sq = SS + 8 + 4 * n
        for r in range(1, 4):
            a('v_cmp_eq_u32 vcc, %d, v5' % r)
            a('v_cndmask_b32 v%d, v%d, v%d, vcc' % (sq, sq, sq + r))
        a('ds_bpermute_b32 v%d, v6, v%d' % (sq, sq))
    a('s_lshl_b32 s14, s9, 1')
    a('s_lshr_b32 s15, s10, 1')
    a('s_add_u32 s14, s14, s15')
    a('s_mul_i32 s14, s14, 56')
    a('s_lshr_b32 s15, s8, 1')
    a('s_mul_i32 s15, s15, 7')
    a('s_add_u32 s14, s14, s15')
    a('s_lshl_b32 s14, s14, 12')
    a('s_and_b32 s15, s10, 1')
    a('s_lshl_b32 s15, s15, 11')
    a('s_add_u32 s14, s14, s15')
    a('s_add_u32 s14, s14, 0x%x' % WS_G)
    a('s_and_b32 s15, s8, 1')
    a('s_mul_i32 s16, s15, %d' % (3 * 4096))
    a('s_add_u32 s16, s16, s14')
    a('v_lshl_add_u32 v10, v2, 4, s16')
    a('s_lshl_b32 s15, s15, 3')
    a('s_add_u32 s14, s14, s15')
    a('s_add_u32 s14, s14, %d' % (6 * 4096))
    a('v_lshl_add_u32 v11, v2, 4, s14')
    a('s_mov_b32 s18, %s' % f32bits(-LOG2E))
    a('s_mov_b32 s19, %s' % f32bits(-LOG2E))
    a('s_waitcnt lgkmcnt(0)')
    for n in range(2):
        stats_finish(a, SS + 4 * n, SS + 8 + 4 * n, 12 + 2 * n, 13 + 2 * n, 5)
    a('s_waitcnt vmcnt(0)')
    P = FR
    T = FR + 32
    for i in range(4):
        for n in range(2):
            mr = vr(12 + 2 * n, 2)
            for ft in ([2 * i, 2 * i + 1] if i < 3 else [6]):
                ac = ACC + 4 * (n * 7 + ft)
                for k in range(2):
                    a('v_pk_fma_f32 %s, %s, %s, %s op_sel:[0,0,0] op_sel_hi:[1,0,1] neg_lo:[1,0,0] neg_hi:[1,0,0]' % (vr(ac + 2 * k, 2), vr(UV + 4 * ft + 2 * k, 2), mr, vr(ac + 2 * k, 2)))
                for k in range(2):
                    a('v_pk_fma_f32 %s, %s, %s, %s op_sel:[0,1,0] op_sel_hi:[1,1,1]' % (vr(ac + 2 * k, 2), vr(ac + 2 * k, 2), mr, vr(UV + 28 + 4 * ft + 2 * k, 2)))
                for k in range(2):
                    a('v_pk_mul_f32 %s, %s, s[18:19]' % (vr(T + 2 * k, 2), vr(ac + 2 * k, 2)))
                for k in range(4):
                    a('v_exp_f32 v%d, v%d' % (T + k, T + k))
                for k in range(2):
                    a('v_pk_add_f32 %s, %s, 1.0 op_sel_hi:[1,0]' % (vr(T + 2 * k, 2), vr(T + 2 * k, 2)))
                for k in range(4):
                    a('v_rcp_f32 v%d, v%d' % (T + k, T + k))
                for k in range(2):
                    a('v_pk_mul_f32 %s, %s, %s' % (vr(ac + 2 * k, 2), vr(ac + 2 * k, 2), vr(T + 2 * k, 2)))
                p = P + 8 * i + 4 * n + 2 * (ft & 1)
                for k in range(2):
                    a('v_cvt_pk_bf16_f32 v%d, v%d, v%d' % (p + k, ac + 2 * k, ac + 2 * k + 1))
            if i < 3:
                a('global_store_dwordx4 v10, %s, s[4:5] offset:%d' % (vr(P + 8 * i + 4 * n, 4), 1024 * n))
            else:
                a('global_store_dwordx2 v11, %s, s[4:5] offset:%d' % (vr(P + 8 * i + 4 * n, 2), 1024 * n))
        if i < 2:
            a('v_add_u32 v10, 4096, v10')
    a('k3_end:')
    a('s_endpgm')


K4_LDS = 49152
G2_DEPTH = 4


def kernel_k4(a):
    a('.p2align 8')
    a('k4_gemm2_kernel:')
    a('s_cmp_ge_u32 s2, 256')
    a('s_cbranch_scc1 k4_end')
    a('s_load_dwordx2 s[4:5], s[0:1], %d' % KA['ws'])
    a('s_load_dwordx2 s[6:7], s[0:1], %d' % KA['out'])
    a('s_and_b32 s3, s2, 7')
    a('s_lshr_b32 s8, s2, 3')
    a('s_lshr_b32 s9, s8, 3')
    a('s_lshl_b32 s3, s3, 2')
    a('s_add_u32 s9, s9, s3')
    a('s_and_b32 s8, s8, 7')
    a('v_lshrrev_b32 v1, 6, v0')
    a('v_and_b32 v2, 63, v0')
    a('v_readfirstlane_b32 s10, v1')
    a('v_and_b32 v3, 15, v0')
    a('v_bfe_u32 v4, v0, 4, 2')
    a('s_mul_i32 s11, s10, %d' % (14 * 4096))
    a('s_mul_i32 s12, s9, %d' % (56 * 4096))
    a('s_add_u32 s12, s12, s11')
    a('s_add_u32 s12, s12, 0x%x' % WS_G)
    a('s_mul_i32 s13, s8, %d' % (56 * 4096))
    a('s_add_u32 s13, s13, s11')
    a('s_add_u32 s13, s13, 0x%x' % WS_W2F)
    a('v_lshlrev_b32 v5, 4, v2')
    for n in range(4):
        a('s_add_u32 s14, s10, %d' % n)
        a('s_and_b32 s14, s14, 3')
        a('s_lshl_b32 s14, s14, 10')
        a('v_add_u32 v%d, s14, v5' % (6 + n))
    a('s_lshl_b32 s14, s9, 6')
    a('s_lshl_b32 s15, s10, 4')
    a('s_add_u32 s14, s14, s15')
    a('v_add_u32 v10, s14, v3')
    a('v_lshlrev_b32 v10, 10, v10')
    a('v_lshl_add_u32 v10, v4, 3, v10')
    a('s_lshl_b32 s14, s8, 7')
    a('v_add_u32 v10, s14, v10')
    a('v_add_u32 v11, 0x%x, v10' % WS_X1N)
    a('s_lshl_b32 s14, s8, 9')
    a('s_add_u32 s14, s14, %d' % (WS_MODP + 2560 * 8))
    a('v_lshl_add_u32 v12, v4, 5, s14')
    a('s_waitcnt lgkmcnt(0)')
    add64(a, 16, 4, 's12')
    add64(a, 18, 4, 's13')
    ACC = 16
    FR = 80
    EP = FR + 32 * G2_DEPTH

    def loads(k):
        f = FR + 32 * (k % G2_DEPTH)
        out = []
        for n in range(4):
            out.append('global_load_dwordx4 %s, v5, s[18:19] offset:%d' % (vr(f + 4 * n, 4), 1024 * n))
            out.append('global_load_dwordx4 %s, v%d, s[16:17]' % (vr(f + 16 + 4 * n, 4), 6 + n))
        out.append('s_add_u32 s16, s16, 4096')
        out.append('s_addc_u32 s17, s17, 0')
        out.append('s_add_u32 s18, s18, 4096')
        out.append('s_addc_u32 s19, s19, 0')
        return out
    for k in range(G2_DEPTH - 1):
        for r in loads(k):
            a(r)
    nload = [G2_DEPTH - 1]
    extra_at = 14 - G2_DEPTH + 1
    for k in range(14):
        f = FR + 32 * (k % G2_DEPTH)
        outstanding = 8 * (nload[0] - 1 - k) + (12 if k > extra_at else 0)
        a('s_waitcnt vmcnt(%d)' % outstanding)
        pend = []
        if nload[0] < 14:
            pend = loads(nload[0])
            nload[0] += 1
        elif k == extra_at:
            pend = ['global_load_dwordx2 %s, v11, s[4:5] offset:%d' % (vr(EP + 2 * dt, 2), 32 * dt) for dt in range(4)]
            for dt in range(4):
                pend.append('global_load_dwordx4 %s, v12, s[4:5] offset:%d' % (vr(EP + 8 + 8 * dt, 4), 128 * dt))
                pend.append('global_load_dwordx4 %s, v12, s[4:5] offset:%d' % (vr(EP + 12 + 8 * dt, 4), 128 * dt + 16))
        order = [(dt, n) for dt in range(4) for n in range(4)]
        if k == 13:
            order = [(dt, n) for n in (1, 2, 3, 0) for dt in range(4)]
        for (dt, n) in order:
            d = vr(ACC + 4 * (dt * 4 + n), 4)
            a('v_mfma_f32_16x16x32_bf16 %s, %s, %s, %s' % (d, vr(f + 4 * dt, 4), vr(f + 16 + 4 * n, 4), d if k else '0'))
            if pend:
                a(pend.pop(0))
        for r in pend:
            a(r)
    for n in range(1, 4):
        a('v_sub_u32 v13, v%d, v5' % (6 + n))
        a('v_mul_u32_u24 v13, 12, v13')
        a('v_add_u32 v13, v13, v5')
        for dt in range(4):
            a('ds_write_b128 v13, %s offset:%d' % (vr(ACC + 4 * (dt * 4 + n), 4), ((n - 1) * 4 + dt) * 1024))
    a('s_mul_i32 s14, s10, 12288')
    a('v_add_u32 v13, s14, v5')
    a('s_waitcnt vmcnt(0)')
    for dt in range(4):
        for r in range(4):
            g = EP + 8 + 8 * dt + 2 * r
            modsum(a, EP + 8 + 8 * dt + r, g, g + 1)
        for k in range(2):
            a('v_lshlrev_b32 v%d, 16, v%d' % (EP + 12 + 8 * dt + 2 * k, EP + 2 * dt + k))
            a('v_and_b32 v%d, 0xffff0000, v%d' % (EP + 13 + 8 * dt + 2 * k, EP + 2 * dt + k))
    a('s_waitcnt lgkmcnt(0)')
    a('s_barrier')
    for dt in range(4):
        for m in range(3):
            a('ds_read_b128 %s, v13 offset:%d' % (vr(FR + 4 * (dt * 3 + m), 4), (m * 4 + dt) * 1024))
    for dt in range(4):
        a('s_waitcnt lgkmcnt(%d)' % (9 - 3 * dt))
        ac = ACC + 16 * dt
        for m in range(3):
            for k in range(2):
                a('v_pk_add_f32 %s, %s, %s' % (vr(ac + 2 * k, 2), vr(ac + 2 * k, 2), vr(FR + 4 * (dt * 3 + m) + 2 * k, 2)))
        for k in range(2):
            a('v_pk_fma_f32 %s, %s, %s, %s' % (vr(ac + 2 * k, 2), vr(ac + 2 * k, 2), vr(EP + 8 + 8 * dt + 2 * k, 2), vr(EP + 12 + 8 * dt + 2 * k, 2)))
        for k in range(2):
            a('v_cvt_pk_bf16_f32 v%d, v%d, v%d' % (EP + 2 * dt + k, ac + 2 * k, ac + 2 * k + 1))
        a('global_store_dwordx2 v10, %s, s[6:7] offset:%d' % (vr(EP + 2 * dt, 2), 32 * dt))
    a('k4_end:')
    a('s_endpgm')


ALL = [
    ('k1_prep_kernel', kernel_k1, K1_WGS, 256, K1_LDS, 124),
    ('k2_conv_kernel', kernel_k2, K2_WGS, 256, K2_LDS, 176),
    ('k3_gemm1_kernel', kernel_k3, 256, 256, K3_LDS, 248),
    ('k4_gemm2_kernel', kernel_k4, 256, 256, K4_LDS, 80 + 32 * G2_DEPTH + 40),
]
```

```python
import sys, math
sys.path.insert(0, 'work')
from asmdsl import Asm, vr, sr, ar, f32bits

NAME = 'adaLN_cond__ssm_conv_s4__dense_activation_silu__prompt'
OUT = 'cdna_kernels/%s.s' % NAME

KA = dict(x=0, A_re=8, A_im=16, B_re=24, B_im=32, C_re=40, C_im=48, log_dt=56, Dskip=64, w1=80, w2=88,
          c=96, w_mod=104, out=112, dbg=120, ws=128)
WS_MODP = 0x0
WS_STATS = 0x8000
WS_U = 0xC000
WS_V = 0xE000
WS_XT = 0x100000
WS_X1T = 0x300000
WS_X1N = 0x500000
WS_W1F = 0x700000
WS_W2F = 0x900000
WS_KT = 0xB00000
WS_G = 0x1000000
KT_PITCH = 4160
LOG2E = 1.4426950408889634


def add64(a, dst, src, off):
    a('s_add_u32 %s, %s, %s' % (sr(dst), sr(src), off if isinstance(off, str) else hex(off)))
    a('s_addc_u32 %s, %s, 0' % (sr(dst + 1), sr(src + 1)))


def cmul(a, d, x, y):
    a('v_pk_mul_f32 %s, %s, %s op_sel:[0,0] op_sel_hi:[0,1]' % (vr(d, 2), vr(x, 2), vr(y, 2)))
    a('v_pk_fma_f32 %s, %s, %s, %s op_sel:[1,1,0] op_sel_hi:[1,0,1] neg_lo:[1,0,0]' % (vr(d, 2), vr(x, 2), vr(y, 2), vr(d, 2)))


def round_bf16(a, d, s):
    a('v_cvt_pk_bf16_f32 v%d, v%d, v%d' % (d, s, s))
    a('v_and_b32 v%d, 0xffff0000, v%d' % (d, d))


K1_KGEN, K1_XPOSE, K1_STATS, K1_MOD = 256, 64, 32, 96
K1_WGS = K1_KGEN + K1_XPOSE + K1_STATS + K1_MOD
KG_ROWP = 272
KG_WAVE = 57 * KG_ROWP + 16
KG_TAB = 4 * KG_WAVE
KG_TABSZ = 820 * 4
K1_LDS = KG_TAB + 2 * KG_TABSZ


def k1_kgen(a):
    a('s_load_dwordx4 s[4:7], s[0:1], %d' % KA['A_re'])
    a('s_load_dwordx4 s[8:11], s[0:1], %d' % KA['B_re'])
    a('s_load_dwordx4 s[12:15], s[0:1], %d' % KA['C_re'])
    a('s_load_dwordx2 s[16:17], s[0:1], %d' % KA['log_dt'])
    a('s_load_dwordx2 s[18:19], s[0:1], %d' % KA['ws'])
    a('s_lshl_b32 s3, s2, 9')
    a('v_lshl_add_u32 v1, v0, 1, s3')
    a('v_lshrrev_b32 v2, 7, v0')
    a('s_lshl_b32 s20, s2, 2')
    a('v_lshl_add_u32 v3, v2, 1, s20')
    for r in range(4, 11):
        a('v_mov_b32 v%d, 0' % r)
    a('s_waitcnt lgkmcnt(0)')
    a('global_load_short_d16_hi v4, v1, s[4:5]')
    a('global_load_short_d16_hi v5, v1, s[6:7]')
    a('global_load_short_d16_hi v10, v3, s[16:17]')
    a('global_load_short_d16_hi v6, v1, s[8:9]')
    a('global_load_short_d16_hi v7, v1, s[10:11]')
    a('global_load_short_d16_hi v8, v1, s[12:13]')
    a('global_load_short_d16_hi v9, v1, s[14:15]')
    a('v_and_b32 v11, 63, v0')
    a('v_lshrrev_b32 v12, 6, v0')
    a('v_mul_u32_u24 v13, %d, v12' % KG_WAVE)
    a('v_lshl_add_u32 v14, v11, 2, v13')
    a('v_and_b32 v15, 15, v0')
    a('v_bfe_u32 v16, v0, 4, 2')
    a('v_mul_u32_u24 v17, %d, v15' % KG_ROWP)
    a('v_add_u32 v17, v17, v13')
    a('v_lshl_add_u32 v17, v16, 4, v17')
    a('v_mul_u32_u24 v18, %d, v2' % KG_TABSZ)
    a('v_add_u32 v18, %d, v18' % KG_TAB)
    a('v_mov_b32 v20, 0')
    a('v_mov_b32 v21, 0')
    a('v_mov_b32 v22, 0')
    a('v_mov_b32 v23, 0')
    a('v_lshlrev_b32 v19, 5, v0')
    a('v_cmp_gt_u32 vcc, %d, v19' % (2 * KG_TABSZ))
    a('s_and_saveexec_b64 s[22:23], vcc')
    a('ds_write_b128 v19, v[20:23] offset:%d' % KG_TAB)
    a('ds_write_b128 v19, v[20:23] offset:%d' % (KG_TAB + 16))
    a('s_mov_b64 exec, s[22:23]')
    assert (2 * KG_TABSZ) % 32 == 0
    a('v_lshrrev_b32 v24, 1, v16')
    a('v_lshlrev_b32 v24, 7, v24')
    a('v_and_b32 v25, 1, v16')
    a('v_lshl_add_u32 v24, v25, 2, v24')
    a('v_lshl_add_u32 v24, v15, 3, v24')
    a('v_lshrrev_b32 v25, 4, v24')
    a('v_add_u32 v24, v24, v25')
    a('v_lshl_add_u32 v24, v24, 2, v18')
    a('v_lshlrev_b32 v25, 2, v15')
    a('v_lshlrev_b32 v26, 1, v15')
    a('v_cmp_gt_u32 vcc, 2, v16')
    a('v_cndmask_b32 v25, v26, v25, vcc')
    a('v_lshl_add_u32 v25, v16, 6, v25')
    a('v_add_u32 v25, 256, v25')
    a('v_lshrrev_b32 v26, 4, v25')
    a('v_add_u32 v25, v25, v26')
    a('v_lshl_add_u32 v25, v25, 2, v18')
    a('v_mov_b32 v26, %d' % (34 * 4))
    a('v_cndmask_b32 v26, v26, 8, vcc')
    a('v_add_u32 v26, v26, v25')
    a('v_mul_u32_u24 v27, 68, v16')
    a('v_add_u32 v27, v27, v15')
    a('v_lshl_add_u32 v27, v27, 2, v18')
    a('v_and_b32 v28, 127, v0')
    a('v_lshlrev_b32 v29, 4, v28')
    a('v_sub_u32 v29, 2047, v29')
    a('s_movk_i32 s21, 0x4280')
    for k in range(0, 17):
        g = 32 + k
        a('v_subrev_u32 v30, %d, v29' % k)
        a('v_cvt_f32_i32 v31, v30')
        a('v_cvt_pk_bf16_f32 v31, v31, v31')
        a('v_and_b32 v31, 0xffff, v31')
        a('v_subrev_u32 v31, s21, v31')
        a('v_min_i32 v30, 128, v30')
        a('v_max_i32 v%d, v30, v31' % g)
        if k == 16:
            a('v_min_u32 v%d, 768, v%d' % (g, g))
        a('v_lshrrev_b32 v30, 4, v%d' % g)
        a('v_add_u32 v%d, v%d, v30' % (g, g))
        a('v_lshl_add_u32 v%d, v%d, 2, v18' % (g, g))
    a('s_mul_i32 s3, s2, %d' % (4 * KT_PITCH))
    a('s_add_u32 s3, s3, 0x%x' % WS_KT)
    add64(a, 18, 18, 's3')
    a('v_mul_u32_u24 v49, %d, v2' % (2 * KT_PITCH))
    a('v_lshl_add_u32 v50, v28, 5, v49')
    a('s_waitcnt lgkmcnt(0)')
    a('s_barrier')
    a('s_waitcnt vmcnt(4)')
    l2e_hi = LOG2E
    import struct
    hi = struct.unpack('<f', struct.pack('<f', LOG2E))[0]
    lo = LOG2E - hi
    a('s_mov_b32 s24, %s' % f32bits(hi))
    a('v_mul_f32 v52, s24, v10')
    a('v_fma_f32 v53, v10, s24, -v52')
    a('v_fmac_f32 v53, %s, v10' % f32bits(lo))
    a('v_exp_f32 v52, v52')
    a('v_mul_f32 v53, %s, v53' % f32bits(math.log(2.0)))
    a('v_fmac_f32 v52, v52, v53')
    round_bf16(a, 52, 52)
    a('v_mul_f32 v54, v52, v4')
    a('v_mul_f32 v55, v52, v5')
    a('v_mul_f32 v54, s24, v54')
    a('v_mul_f32 v55, 0.15915494, v55')

    def ev(d, e):
        a('v_mul_f32 v56, %s, v54' % f32bits(float(e)))
        a('v_mul_f32 v57, %s, v55' % f32bits(float(e)))
        a('v_fract_f32 v57, v57')
        a('v_exp_f32 v56, v56')
        a('v_cos_f32 v58, v57')
        a('v_sin_f32 v59, v57')
        a('v_pk_mul_f32 %s, v[58:59], v[56:57] op_sel_hi:[1,0]' % vr(d, 2))

    tmpi = [0]

    def wrow(row, src, neg=False):
        t = 100 + (tmpi[0] & 3)
        tmpi[0] += 1
        a('v_cvt_pk_bf16_f32 v%d, v%d, %sv%d' % (t, src, '-' if neg else '', src + 1))
        a('ds_write_b32 v14, v%d offset:%d' % (t, row * KG_ROWP))

    Z = {r: 60 + 2 * r for r in range(1, 9)}
    H1, HA, HB = 78, 80, 82
    YA, YB = 84, 86
    T0, T1 = 88, 90
    ev(Z[1], 1)
    ev(Z[8], 8)
    ev(H1, 128)
    a('v_mov_b32 v99, 0x3f80')
    a('ds_write_b32 v14, v99')
    wrow(1, Z[1])
    wrow(8, H1)
    cmul(a, Z[2], Z[1], Z[1])
    cmul(a, HA, H1, H1)
    a('s_waitcnt vmcnt(0)')
    a('v_pk_mul_f32 v[6:7], v[6:7], v[52:53] op_sel_hi:[1,0]')
    cmul(a, YA, 8, 6)
    cmul(a, Z[3], Z[2], Z[1])
    cmul(a, Z[4], Z[2], Z[2])
    wrow(41, YA, True)
    wrow(2, Z[2])
    cmul(a, Z[5], Z[4], Z[1])
    cmul(a, Z[6], Z[3], Z[3])
    cmul(a, Z[7], Z[4], Z[3])
    for r in range(3, 8):
        wrow(r, Z[r])
    prods = []
    for r in range(1, 8):
        prods.append((8 + r, 1, r))
    ycur, ynext = YA, YB
    hcur, hnext = HA, HB
    hidx = 2
    todo = list(prods)
    for step in range(15):
        cmul(a, ynext, ycur, Z[8])
        if hidx <= 16:
            rows = []
            if hidx in (2, 3):
                rows = [(16 + 4 * (hidx - 2) + r, 2 * r) for r in range(4)]
            elif 4 <= hidx <= 7:
                rows = [(24 + 2 * (hidx - 4) + r, 4 * r) for r in range(2)]
            else:
                rows = [(32 + hidx - 8, 0)]
            if hidx < 16:
                cmul(a, hnext, hcur, H1)
            tt = [T0, T1]
            for i, (row, zr) in enumerate(rows):
                if zr == 0:
                    wrow(row, hcur)
                else:
                    cmul(a, tt[i & 1], hcur, Z[zr])
                    wrow(row, tt[i & 1])
            hcur, hnext = hnext, hcur
            hidx += 1
        wrow(42 + step, ynext, True)
        if step >= 6 and todo:
            row, _, zr = todo.pop(0)
            cmul(a, T0, H1, Z[zr])
            wrow(row, T0)
        ycur, ynext = ynext, ycur
    assert hidx == 17 and not todo
    a('s_waitcnt lgkmcnt(0)')
    for s in range(4):
        a('ds_read_b128 %s, v17 offset:%d' % (vr(60 + 4 * s, 4), 41 * KG_ROWP + 64 * s))
    for T in range(3):
        for s in range(4):
            a('ds_read_b128 %s, v17 offset:%d' % (vr(76 + 16 * T + 4 * s, 4), 16 * T * KG_ROWP + 64 * s))
    acc = [4, 8, 52]
    for T in range(3):
        a('s_waitcnt lgkmcnt(%d)' % (8 - 4 * T))
        for s in range(4):
            a('v_mfma_f32_16x16x32_bf16 %s, %s, %s, %s' % (vr(acc[T], 4), vr(76 + 16 * T + 4 * s, 4), vr(60 + 4 * s, 4),
                                                          '0' if s == 0 else vr(acc[T], 4)))
    for r in range(4):
        a('ds_add_f32 v24, v%d offset:%d' % (acc[0] + r, 4 * r))
    a('ds_add_f32 v25, v%d' % (acc[1] + 0))
    a('ds_add_f32 v25, v%d offset:4' % (acc[1] + 1))
    a('ds_add_f32 v26, v%d' % (acc[1] + 2))
    a('ds_add_f32 v26, v%d offset:4' % (acc[1] + 3))
    for r in range(4):
        a('ds_add_f32 v27, v%d offset:%d' % (acc[2] + r, (544 + 17 * r) * 4))
    a('s_waitcnt lgkmcnt(0)')
    a('s_barrier')
    for k in range(17):
        a('ds_read_b32 v%d, v%d' % (60 + k, 32 + k))
    a('s_waitcnt lgkmcnt(0)')
    for m in range(8):
        a('v_cvt_pk_bf16_f32 v%d, v%d, v%d' % (80 + m, 60 + 2 * m, 61 + 2 * m))
    a('global_store_dwordx4 v50, v[80:83], s[18:19]')
    a('global_store_dwordx4 v50, v[84:87], s[18:19] offset:16')
    for m in range(8):
        a('v_cvt_pk_bf16_f32 v%d, v%d, v%d' % (88 + m, 61 + 2 * m, 62 + 2 * m))
    a('v_add_u32 v51, %d, v50' % KT_PITCH)
    a('global_store_dwordx4 v51, v[88:91], s[18:19]')
    a('global_store_dwordx4 v51, v[92:95], s[18:19] offset:16')
    a('v_mul_u32_u24 v51, %d, v28' % KT_PITCH)
    a('v_add_u32 v51, v51, v49')
    a('v_add_u32 v51, 4096, v51')
    a('v_cmp_gt_u32 vcc, 2, v28')
    a('s_and_saveexec_b64 s[22:23], vcc')
    lab = a.label('kg_end')
    a('s_cbranch_execz %s' % lab)
    a('global_store_dwordx4 v51, v[20:23], s[18:19]')
    a(lab + ':')
    a('s_endpgm')


def k1_xpose(a):
    a('s_load_dwordx2 s[4:5], s[0:1], %d' % KA['x'])
    a('s_load_dwordx2 s[6:7], s[0:1], %d' % KA['ws'])
    a('v_lshrrev_b32 v1, 6, v0')
    a('v_and_b32 v2, 63, v0')
    a('s_lshl_b32 s3, s2, 15')
    a('v_lshl_add_u32 v1, v1, 13, s3')
    a('v_lshl_add_u32 v3, v2, 4, v1')
    a('v_add_u32 v4, 4096, v3')
    a('v_lshl_add_u32 v5, v2, 7, v1')
    a('s_mov_b32 s8, 0x05040100')
    a('s_mov_b32 s9, 0x07060302')
    a('s_waitcnt lgkmcnt(0)')
    for r in range(8):
        a('global_load_dwordx4 %s, v%d, s[4:5] offset:%d' % (vr(8 + 4 * r, 4), 3 if r < 4 else 4, (r & 3) * 1024))
    add64(a, 6, 6, WS_XT)
    a('s_waitcnt vmcnt(0)')
    for c in range(8):
        k, e = c >> 1, c & 1
        for m in range(4):
            a('v_perm_b32 v%d, v%d, v%d, s%d' % (40 + 4 * c + m, 8 + 4 * (2 * m + 1) + k, 8 + 4 * (2 * m) + k, 8 + e))
        a('global_store_dwordx4 v5, %s, s[6:7] offset:%d' % (vr(40 + 4 * c, 4), 16 * c))
    a('s_endpgm')


def stats_finish(a, vs, vq, vm, vr_, t):
    a('v_mul_f32 v%d, %s, v%d' % (vs, f32bits(1.0 / 512), vs))
    a('v_mul_f32 v%d, %s, v%d' % (vq, f32bits(1.0 / 512), vq))
    a('v_fma_f32 v%d, -v%d, v%d, v%d' % (t, vs, vs, vq))
    a('v_max_f32 v%d, 0, v%d' % (t, t))
    round_bf16(a, t, t)
    a('v_add_f32 v%d, %s, v%d' % (t, f32bits(1e-5), t))
    round_bf16(a, t, t)
    a('v_sqrt_f32 v%d, v%d' % (t, t))
    round_bf16(a, vm, vs)
    round_bf16(a, t, t)
    a('v_rcp_f32 v%d, v%d' % (vr_, t))


def k1_stats(a):
    a('s_load_dwordx2 s[4:5], s[0:1], %d' % KA['x'])
    a('s_load_dwordx2 s[6:7], s[0:1], %d' % KA['ws'])
    a('v_lshrrev_b32 v1, 6, v0')
    a('v_and_b32 v2, 15, v0')
    a('v_bfe_u32 v3, v0, 4, 2')
    a('v_lshl_add_u32 v1, v1, 4, v2')
    a('s_lshl_b32 s3, s2, 6')
    a('v_add_u32 v1, s3, v1')
    a('v_lshlrev_b32 v4, 10, v1')
    a('v_lshl_add_u32 v4, v3, 4, v4')
    a('v_mov_b32 v8, 0x3f803f80')
    a('v_mov_b32 v9, 0x3f803f80')
    a('v_mov_b32 v10, 0x3f803f80')
    a('v_mov_b32 v11, 0x3f803f80')
    a('s_waitcnt lgkmcnt(0)')
    for s in range(16):
        a('global_load_dwordx4 %s, v4, s[4:5] offset:%d' % (vr(20 + 4 * s, 4), 64 * s))
    add64(a, 6, 6, WS_STATS)
    for s in range(16):
        a('s_waitcnt vmcnt(%d)' % (15 - s))
        b = vr(20 + 4 * s, 4)
        a('v_mfma_f32_16x16x32_bf16 v[12:15], v[8:11], %s, %s' % (b, '0' if s == 0 else 'v[12:15]'))
        a('v_mfma_f32_16x16x32_bf16 v[16:19], %s, %s, %s' % (b, b, '0' if s == 0 else 'v[16:19]'))
    a('v_and_b32 v5, 3, v0')
    a('v_cmp_eq_u32 vcc, 1, v5')
    a('v_cndmask_b32 v16, v16, v17, vcc')
    a('v_cmp_eq_u32 vcc, 2, v5')
    a('v_cndmask_b32 v16, v16, v18, vcc')
    a('v_cmp_eq_u32 vcc, 3, v5')
    a('v_cndmask_b32 v16, v16, v19, vcc')
    stats_finish(a, 12, 16, 20, 21, 22)
    a('v_lshrrev_b32 v5, 2, v2')
    a('v_lshlrev_b32 v6, 2, v1')
    a('v_add_u32 v7, 8192, v6')
    a('v_mul_f32 v20, v20, v21')
    a('v_sub_f32 v20, 0, v20')
    a('v_cmp_eq_u32 vcc, v5, v3')
    a('s_and_saveexec_b64 s[8:9], vcc')
    a('global_store_dword v6, v21, s[6:7]')
    a('global_store_dword v7, v20, s[6:7]')
    a('s_endpgm')


def k1_mod(a):
    a('s_load_dwordx4 s[4:7], s[0:1], %d' % KA['c'])
    a('s_load_dwordx2 s[8:9], s[0:1], %d' % KA['ws'])
    a('s_lshr_b32 s10, s2, 1')
    a('s_and_b32 s11, s2, 1')
    a('v_lshrrev_b32 v1, 3, v0')
    a('v_and_b32 v2, 7, v0')
    a('s_lshl_b32 s3, s11, 8')
    a('v_lshl_add_u32 v3, v1, 3, s3')
    a('v_lshlrev_b32 v4, 1, v3')
    a('v_mul_u32_u24 v5, 6144, v3')
    a('s_lshl_b32 s3, s10, 7')
    a('v_lshl_add_u32 v6, v2, 4, s3')
    a('v_add_u32 v5, v5, v6')
    a('s_waitcnt lgkmcnt(0)')
    a('global_load_dwordx4 v[8:11], v4, s[4:5]')
    for i in range(8):
        if i:
            a('v_add_u32 v5, 6144, v5')
        a('global_load_dwordx4 %s, v5, s[6:7]' % vr(32 + 4 * i, 4))
    a('s_waitcnt vmcnt(8)')
    for i in range(8):
        if i & 1:
            a('v_and_b32 v%d, 0xffff0000, v%d' % (12 + i, 8 + (i >> 1)))
        else:
            a('v_lshlrev_b32 v%d, 16, v%d' % (12 + i, 8 + (i >> 1)))
    for i in range(8):
        a('v_mul_f32 v%d, %s, v%d' % (20 + i, f32bits(-LOG2E), 12 + i))
    for i in range(8):
        a('v_exp_f32 v%d, v%d' % (20 + i, 20 + i))
    for i in range(8):
        a('v_add_f32 v%d, 1.0, v%d' % (20 + i, 20 + i))
    for i in range(8):
        a('v_rcp_f32 v%d, v%d' % (20 + i, 20 + i))
    for i in range(8):
        a('v_mul_f32 v%d, v%d, v%d' % (12 + i, 12 + i, 20 + i))
    for i in range(8):
        round_bf16(a, 12 + i, 12 + i)
    for i in range(8):
        a('s_waitcnt vmcnt(%d)' % (7 - i))
        for k in range(4):
            a('v_lshlrev_b32 v%d, 16, v%d' % (20 + 2 * k, 32 + 4 * i + k))
            a('v_and_b32 v%d, 0xffff0000, v%d' % (21 + 2 * k, 32 + 4 * i + k))
        sp = 12 + (i & ~1)
        sel = 'op_sel:[0,%d,0] op_sel_hi:[1,%d,1]' % (i & 1, i & 1)
        sel2 = 'op_sel:[0,%d] op_sel_hi:[1,%d]' % (i & 1, i & 1)
        for k in range(4):
            if i == 0:
                a('v_pk_mul_f32 %s, %s, %s %s' % (vr(64 + 2 * k, 2), vr(20 + 2 * k, 2), vr(sp, 2), sel2))
            else:
                a('v_pk_fma_f32 %s, %s, %s, %s %s' % (vr(64 + 2 * k, 2), vr(20 + 2 * k, 2), vr(sp, 2), vr(64 + 2 * k, 2), sel))
    a('v_mul_u32_u24 v7, 288, v1')
    a('v_lshl_add_u32 v7, v2, 5, v7')
    a('ds_write_b128 v7, v[64:67]')
    a('ds_write_b128 v7, v[68:71] offset:16')
    a('v_lshrrev_b32 v1, 2, v0')
    a('v_and_b32 v2, 3, v0')
    a('v_mul_u32_u24 v7, 288, v2')
    a('v_lshl_add_u32 v7, v1, 2, v7')
    a('s_waitcnt lgkmcnt(0)')
    a('s_barrier')
    for i in range(8):
        a('ds_read_b32 v%d, v7 offset:%d' % (8 + i, 4 * 288 * i))
    a('s_lshl_b32 s3, s10, 9')
    a('s_lshl_b32 s11, s11, 2')
    a('s_add_u32 s3, s3, s11')
    a('v_lshl_add_u32 v3, v1, 3, s3')
    a('s_waitcnt lgkmcnt(0)')
    for i in range(4):
        a('v_add_f32 v%d, v%d, v%d' % (8 + i, 8 + i, 12 + i))
    a('v_add_f32 v8, v8, v10')
    a('v_add_f32 v9, v9, v11')
    a('v_add_f32 v8, v8, v9')
    a('v_add_f32_dpp v8, v8, v8 quad_perm:[1,0,3,2] row_mask:0xf bank_mask:0xf')
    a('v_add_f32_dpp v8, v8, v8 quad_perm:[2,3,0,1] row_mask:0xf bank_mask:0xf')
    a('v_cmp_eq_u32 vcc, 0, v2')
    a('s_and_saveexec_b64 s[12:13], vcc')
    a('global_store_dword v3, v8, s[8:9] offset:%d' % WS_MODP)
    a('s_endpgm')


def kernel_k1(a):
    a('.p2align 8')
    a('k1_prep_kernel:')
    a('s_cmp_lt_u32 s2, %d' % K1_KGEN)
    a('s_cbranch_scc1 k1_kgen')
    a('s_sub_u32 s2, s2, %d' % K1_KGEN)
    a('s_cmp_lt_u32 s2, %d' % K1_XPOSE)
    a('s_cbranch_scc1 k1_xpose')
    a('s_sub_u32 s2, s2, %d' % K1_XPOSE)
    a('s_cmp_lt_u32 s2, %d' % K1_STATS)
    a('s_cbranch_scc1 k1_stats')
    a('s_sub_u32 s2, s2, %d' % K1_STATS)
    a('s_cmp_lt_u32 s2, %d' % K1_MOD)
    a('s_cbranch_scc1 k1_mod')
    a('s_endpgm')
    a('k1_xpose:')
    k1_xpose(a)
    a('k1_stats:')
    k1_stats(a)
    a('k1_mod:')
    k1_mod(a)
    a('k1_kgen:')
    k1_kgen(a)


def descriptor(name, vgpr, sgpr=64, accum=None):
    if accum is None:
        accum = (vgpr + 3) // 4 * 4
    return '''.p2align 6
.amdhsa_kernel %s
  .amdhsa_next_free_vgpr %d
  .amdhsa_next_free_sgpr %d
  .amdhsa_accum_offset %d
  .amdhsa_group_segment_fixed_size 0
  .amdhsa_kernarg_size 136
  .amdhsa_user_sgpr_count 2
  .amdhsa_user_sgpr_kernarg_segment_ptr 1
  .amdhsa_system_sgpr_workgroup_id_x 1
.end_amdhsa_kernel
''' % (name, vgpr, sgpr, accum)


def build(kernels, path=OUT):
    a = Asm()
    hdr = ['; adaLN + S4 conv (MFMA Toeplitz) + SiLU MLP, generated by work/gen.py']
    for lab, fn, grid, block, lds, vgpr in kernels:
        hdr.append('; @launch kernel=%s grid=(%d,1,1) block=(%d,1,1) lds=%d' % (lab, grid, block, lds))
    hdr.append('.amdgcn_target "amdgcn-amd-amdhsa--gfx950"')
    hdr.append('.text')
    seen = []
    for lab, fn, grid, block, lds, vgpr in kernels:
        if lab in seen:
            continue
        seen.append(lab)
        a.raw('.globl %s' % lab)
        a.raw('.type %s,@function' % lab)
        fn(a)
    body = a.render()
    tail = '.section .rodata,"a"\n'
    seen = []
    for lab, fn, grid, block, lds, vgpr in kernels:
        if lab in seen:
            continue
        seen.append(lab)
        tail += descriptor(lab, vgpr)
    open(path, 'w').write('\n'.join(hdr) + '\n' + body + tail)
    print('wrote', path, 'nops inserted:', a.nnop)


if __name__ == '__main__':
    from gen2 import ALL
    build(ALL)
```

```python
import sys
sys.path.insert(0, 'work')
from gen import *
from gen2 import ALL
def knop(a):
    a('.p2align 8')
    a('nop_kernel:')
    a('s_endpgm')
N = ('nop_kernel', knop, 256, 256, 0, 8)
build(ALL + [N]*2, 'v_nop2.s')
build(ALL + [N]*4, 'v_nop4.s')
build([N]*4 + ALL, 'v_nop4pre.s')
build(ALL + [ALL[3]], 'v_k4x2.s')
build([ALL[0]] + ALL, 'v_k1x2.s')
```
